```python
import torch

def _softmax(x, axis=-1):
    return torch.softmax(x, dim=axis)
def _gelu(x):
    return torch.nn.functional.gelu(x, approximate="tanh")
def _silu(x):
    return torch.nn.functional.silu(x)
def _sigmoid(x):
    return torch.sigmoid(x)
def _layernorm(x, axis=-1, eps=1e-5):
    m = x.mean(dim=axis, keepdim=True)
    v = x.var(dim=axis, keepdim=True, unbiased=False)
    return (x - m) / torch.sqrt(v + eps)
def _scatter_add(tgt, idx, src, axis=0):
    return tgt.clone().index_add_(axis, idx, src)
def _segment_sum(src, seg, n):
    out = torch.zeros((n,) + src.shape[1:], dtype=src.dtype)
    return out.index_add_(0, seg, src)
def _pad(x, pw):
    flat = tuple(v for pair in reversed(pw) for v in pair)
    return torch.nn.functional.pad(x, flat)

kernel_name = 'concat_heads__mha_block_cached__mha_block_cached__near_ridge'

def setup_inputs():

    _w = (lambda a: (lambda t: t.to(torch.bfloat16) if t.is_floating_point() else t)(torch.as_tensor(a)))
    def _A_setup():
        B, Sq, D = 16, 96, 512
        H, Sk, Dh = 32, 96, 128
        return {
            "x": _w((lambda *s: torch.randn(*s, dtype=torch.bfloat16) * 0.8)(B, Sq, D)),
            "k_cache": _w((lambda *s: torch.randn(*s, dtype=torch.bfloat16) * 0.8)(B, H, Sk, Dh)),
            "v_cache": _w((lambda *s: torch.randn(*s, dtype=torch.bfloat16) * 0.05)(B, H, Sk, Dh)),
            "wq": _w((lambda *s: torch.randn(*s, dtype=torch.bfloat16) * 0.8)(D, H * Dh) * (D ** -0.5)),
            "wo": _w((lambda *s: torch.randn(*s, dtype=torch.bfloat16) * 0.05)(H * Dh, D) * ((H * Dh) ** -0.5)),
        }
    _A_in = _A_setup()

    def _B_setup():
        B, Sq, D = 16, 96, 512
        H, Sk, Dh = 32, 96, 128
        return {
            "x": _w((lambda *s: torch.randn(*s, dtype=torch.bfloat16) * 0.8)(B, Sq, D)),
            "k_cache": _w((lambda *s: torch.randn(*s, dtype=torch.bfloat16) * 0.8)(B, H, Sk, Dh)),
            "v_cache": _w((lambda *s: torch.randn(*s, dtype=torch.bfloat16) * 0.05)(B, H, Sk, Dh)),
            "wq": _w((lambda *s: torch.randn(*s, dtype=torch.bfloat16) * 0.8)(D, H * Dh) * (D ** -0.5)),
            "wo": _w((lambda *s: torch.randn(*s, dtype=torch.bfloat16) * 0.05)(H * Dh, D) * ((H * Dh) ** -0.5)),
        }
    _B_in = _B_setup()

    return {
        "A_x": _A_in["x"],
        "A_k_cache": _A_in["k_cache"],
        "A_v_cache": _A_in["v_cache"],
        "A_wq": _A_in["wq"],
        "A_wo": _A_in["wo"],
        "B_x": _B_in["x"],
        "B_k_cache": _B_in["k_cache"],
        "B_v_cache": _B_in["v_cache"],
        "B_wq": _B_in["wq"],
        "B_wo": _B_in["wo"],
    }

def reference(A_x, A_k_cache, A_v_cache, A_wq, A_wo, B_x, B_k_cache, B_v_cache, B_wq, B_wo):
    def _A_ref(x, k_cache, v_cache, wq, wo):
        B, Sq, D = x.shape
        H, Dh = 32, 128
        q = (lambda x, *d: x.permute(*d))((x @ wq).reshape(B, Sq, H, Dh), 0, 2, 1, 3)
        scores = torch.einsum("bhqd,bhkd->bhqk", q, k_cache) * (Dh ** -0.5)
        p = _softmax(scores, axis=-1)
        o = torch.einsum("bhqk,bhkd->bhqd", p, v_cache)
        return (lambda x, *d: x.permute(*d))(o, 0, 2, 1, 3).reshape(B, Sq, H * Dh) @ wo

    def _B_ref(x, k_cache, v_cache, wq, wo):
        B, Sq, D = x.shape
        H, Dh = 32, 128
        q = (lambda x, *d: x.permute(*d))((x @ wq).reshape(B, Sq, H, Dh), 0, 2, 1, 3)
        scores = torch.einsum("bhqd,bhkd->bhqk", q, k_cache) * (Dh ** -0.5)
        p = _softmax(scores, axis=-1)
        o = torch.einsum("bhqk,bhkd->bhqd", p, v_cache)
        return (lambda x, *d: x.permute(*d))(o, 0, 2, 1, 3).reshape(B, Sq, H * Dh) @ wo

    a = _A_ref(A_x, A_k_cache, A_v_cache, A_wq, A_wo)
    b = _B_ref(B_x, B_k_cache, B_v_cache, B_wq, B_wo)
    return torch.concatenate([a, b], axis=-1)
```

```python
import re


class R:
    __slots__ = ("k", "i", "n")

    def __init__(self, k, i, n=1):
        self.k, self.i, self.n = k, i, n

    def __str__(self):
        if self.n == 1:
            return f"{self.k}{self.i}"
        return f"{self.k}[{self.i}:{self.i + self.n - 1}]"

    __repr__ = __str__

    def regs(self):
        return [(self.k, self.i + t) for t in range(self.n)]

    def sub(self, off, n=1):
        assert 0 <= off and off + n <= self.n, (self, off, n)
        return R(self.k, self.i + off, n)

    def __getitem__(self, off):
        return self.sub(off, 1)


def v(i, n=1):
    assert 0 <= i and i + n <= 256, (i, n)
    return R("v", i, n)


def a(i, n=1):
    assert 0 <= i and i + n <= 256, (i, n)
    return R("a", i, n)


def s(i, n=1):
    assert 0 <= i and i + n <= 102, (i, n)
    return R("s", i, n)


class Sp:
    def __init__(self, name):
        self.name = name

    def __str__(self):
        return self.name

    def regs(self):
        return [self.name]


VCC, EXEC, M0 = Sp("vcc"), Sp("exec"), Sp("m0")


class Neg:
    def __init__(self, r):
        self.r = r

    def __str__(self):
        return f"-{self.r}"

    def regs(self):
        return self.r.regs()


def regs_of(x):
    if hasattr(x, "regs"):
        return list(x.regs())
    return []


TRANS = ("v_exp_f32", "v_log_f32", "v_rcp_f32", "v_rsq_f32", "v_sqrt_f32", "v_sin_f32", "v_cos_f32")


class Inst:
    __slots__ = ("text", "cls", "rd", "wr", "ldsr", "ldsw", "cost", "tag", "prio", "after", "mf_c", "mf_ab", "nbytes", "pin")

    def __init__(self, text, cls, rd=(), wr=(), ldsr=(), ldsw=(), tag=None):
        self.text, self.cls = text, cls
        self.rd, self.wr = set(rd), set(wr)
        self.ldsr, self.ldsw = set(ldsr), set(ldsw)
        self.tag = tag
        self.mf_c = set()
        self.mf_ab = set()
        self.after = []
        self.prio = 0
        self.pin = False

    def __repr__(self):
        return self.text


class Prog:
    def __init__(self):
        self.ins = []

    def add(self, inst):
        self.ins.append(inst)
        return inst

    def raw(self, text, cls="other", rd=(), wr=()):
        return self.add(Inst(text, cls, rd, wr))

    def label(self, name):
        return self.add(Inst(name + ":", "label"))

    def comment(self, t):
        return self.add(Inst("; " + t, "comment"))

    def mfma(self, d, A, B, c=None):
        c = d if c is None else c
        i = Inst(f"v_mfma_f32_32x32x16_bf16 {d}, {A}, {B}, {c}", "mfma",
                 regs_of(A) + regs_of(B) + regs_of(c), regs_of(d))
        i.mf_c = set(regs_of(c))
        i.mf_ab = set(regs_of(A) + regs_of(B))
        return self.add(i)

    def valu(self, op, *ops, ndst=1, mods="", rd=(), wr=()):
        dst, src = ops[:ndst], ops[ndst:]
        r = [x for o in src for x in regs_of(o)] + list(rd)
        w = [x for o in dst for x in regs_of(o)] + list(wr)
        base = op.replace("_e32", "").replace("_e64", "")
        cls = "trans" if base in TRANS else "valu"
        if base.startswith("v_fmac") or base.startswith("v_writelane"):
            r += w
        if base.startswith("v_permlane32_swap") or base.startswith("v_permlane16_swap"):
            cls = "permlane"
            r = [x for o in ops for x in regs_of(o)]
            w = list(r)
        if base.startswith("v_readfirstlane") or base.startswith("v_readlane"):
            cls = "readlane"
        if base.startswith("v_cndmask") and not any(str(o) == "vcc" for o in ops):
            pass
        txt = f"{op} " + ", ".join(str(o) for o in ops) + (" " + mods if mods else "")
        return self.add(Inst(txt, cls, r, w))

    def salu(self, op, *ops, ndst=1, scc_w=None, scc_r=False):
        dst, src = ops[:ndst], ops[ndst:]
        r = [x for o in src for x in regs_of(o)]
        w = [x for o in dst for x in regs_of(o)]
        nos = ("s_mov_b32", "s_mov_b64", "s_mul_i32", "s_mul_hi_u32", "s_cselect_b32", "s_cselect_b64", "s_movk_i32", "s_getreg_b32")
        if scc_w is None:
            scc_w = op not in nos
        if scc_w:
            w.append("scc")
        if op.startswith("s_cselect") or op in ("s_addc_u32", "s_subb_u32") or scc_r:
            r.append("scc")
        txt = f"{op} " + ", ".join(str(o) for o in ops)
        return self.add(Inst(txt, "salu", r, w))

    def scmp(self, op, x, y):
        return self.add(Inst(f"{op} {x}, {y}", "salu", regs_of(x) + regs_of(y), ["scc"]))

    def branch(self, op, label):
        rd = ["scc"] if "scc" in op else []
        return self.add(Inst(f"{op} {label}", "branch", rd))

    def ds_read(self, op, d, addr, offset=0, lds=()):
        assert 0 <= offset < 65536, offset
        o = f" offset:{offset}" if offset else ""
        return self.add(Inst(f"{op} {d}, {addr}{o}", "ds_read", regs_of(addr), regs_of(d), ldsr=lds))

    def ds_write(self, op, addr, src, offset=0, lds=()):
        assert 0 <= offset < 65536, offset
        o = f" offset:{offset}" if offset else ""
        return self.add(Inst(f"{op} {addr}, {src}{o}", "ds_write", regs_of(addr) + regs_of(src), (), ldsw=lds))

    def dma(self, vaddr, srd, soff, offset=0, lds=(), aux=""):
        assert 0 <= offset < 4096
        o = f" offset:{offset}" if offset else ""
        x = f" {aux}" if aux else ""
        return self.add(Inst(f"buffer_load_dwordx4 {vaddr}, {srd}, {soff} offen{o}{x} lds", "dma",
                             regs_of(vaddr) + regs_of(srd) + regs_of(soff) + ["m0"], (), ldsw=lds))

    def bload(self, op, d, vaddr, srd, soff, offset=0, aux=""):
        assert 0 <= offset < 4096
        o = f" offset:{offset}" if offset else ""
        x = f" {aux}" if aux else ""
        return self.add(Inst(f"{op} {d}, {vaddr}, {srd}, {soff} offen{o}{x}", "vload",
                             regs_of(vaddr) + regs_of(srd) + regs_of(soff), regs_of(d)))

    def bstore(self, op, src, vaddr, srd, soff, offset=0, aux=""):
        assert 0 <= offset < 4096
        o = f" offset:{offset}" if offset else ""
        x = f" {aux}" if aux else ""
        return self.add(Inst(f"{op} {src}, {vaddr}, {srd}, {soff} offen{o}{x}", "vstore",
                             regs_of(src) + regs_of(vaddr) + regs_of(srd) + regs_of(soff), ()))

    def barrier(self, lds_ready=(), lds_free=()):
        i = Inst("s_barrier", "barrier", ldsr=lds_ready, ldsw=lds_free)
        return self.add(i)

    def waitcnt(self, vm=None, lgkm=None):
        t = []
        if vm is not None:
            t.append(f"vmcnt({vm})")
        if lgkm is not None:
            t.append(f"lgkmcnt({lgkm})")
        i = Inst("s_waitcnt " + " ".join(t), "waitcnt")
        i.tag = (vm, lgkm)
        return self.add(i)

    def nop(self, n):
        i = Inst(f"s_nop {n}", "nop")
        i.tag = n
        return self.add(i)


VMEM = ("dma", "vload", "vstore")
DS = ("ds_read", "ds_write")
VALUISH = ("valu", "trans", "permlane", "readlane")


def insert_waits(ins):
    out = []
    vmq, lgq = [], []

    def need(q, inst, isvm):
        touch = inst.rd | inst.wr
        pos = -1
        for n, op in enumerate(q):
            hit = False
            if op.wr & touch:
                hit = True
            if isvm:
                if op.ldsw & (inst.ldsr | inst.ldsw):
                    if not (inst.cls == "dma" and not (op.ldsw & inst.ldsr)):
                        hit = True
            else:
                if inst.cls == "barrier":
                    if op.ldsw & inst.ldsr or op.ldsr & inst.ldsw:
                        hit = True
                elif inst.cls == "dma":
                    if (op.ldsr | op.ldsw) & inst.ldsw:
                        hit = True
            if hit:
                pos = n
        return pos

    for inst in ins:
        if inst.cls == "waitcnt":
            vm, lg = inst.tag
            if vm is not None:
                vmq = vmq[max(0, len(vmq) - vm):] if vm < len(vmq) else vmq
                if vm == 0:
                    vmq = []
            if lg is not None:
                lgq = lgq[max(0, len(lgq) - lg):] if lg < len(lgq) else lgq
                if lg == 0:
                    lgq = []
            out.append(inst)
            continue
        if inst.cls in ("label", "comment", "nop"):
            out.append(inst)
            continue
        pv = need(vmq, inst, True)
        pl = need(lgq, inst, False)
        vm = lg = None
        if pv >= 0:
            vm = min(63, len(vmq) - 1 - pv)
            vmq = vmq[len(vmq) - vm:] if vm else []
        if pl >= 0:
            lg = min(15, len(lgq) - 1 - pl)
            lgq = lgq[len(lgq) - lg:] if lg else []
        if vm is not None or lg is not None:
            t = []
            if vm is not None:
                t.append(f"vmcnt({vm})")
            if lg is not None:
                t.append(f"lgkmcnt({lg})")
            w = Inst("s_waitcnt " + " ".join(t), "waitcnt")
            w.tag = (vm, lg)
            out.append(w)
        out.append(inst)
        if inst.cls in VMEM:
            assert len(vmq) < 63, "too many outstanding VMEM ops"
            vmq.append(inst)
        elif inst.cls in DS:
            lgq.append(inst)
    return out


def insert_nops(ins):
    out = []
    lastw = {}
    lastc = {}
    laststore = {}
    slot = 0

    def req(inst):
        need = 0

        def chk(s0, n):
            nonlocal need
            d = slot - s0 - 1
            if n - d > need:
                need = n - d

        rd, wr = inst.rd, inst.wr
        c = inst.cls
        for r in rd:
            if r in lastw:
                s0, k = lastw[r]
                if k == "mfma":
                    if c == "mfma":
                        if r in inst.mf_c and r not in inst.mf_ab:
                            if lastw[r][0] is not None and not inst.wr >= {r}:
                                chk(s0, 10)
                        else:
                            chk(s0, 12)
                    else:
                        chk(s0, 12)
                elif k in VALUISH:
                    if c == "mfma":
                        chk(s0, 2)
                    elif c == "permlane":
                        chk(s0, 2)
                    elif c == "readlane" and r[0] == "v":
                        chk(s0, 1)
                    elif k == "trans" and c in ("valu", "permlane", "readlane"):
                        chk(s0, 1)
                    if isinstance(r, tuple) and r[0] == "s" or r == "vcc":
                        if c in VMEM:
                            chk(s0, 5)
                        elif c in VALUISH:
                            chk(s0, 2)
                elif k == "salu":
                    if r == "m0" and c in ("dma",):
                        chk(s0, 1)
        for r in wr:
            if r in lastw:
                s0, k = lastw[r]
                if k == "mfma" and c != "mfma":
                    chk(s0, 12)
                if k == "mfma" and c == "mfma" and r not in inst.mf_c:
                    chk(s0, 12)
            if r in lastc and c in VALUISH:
                chk(lastc[r], 7)
            if r in laststore:
                chk(laststore[r], 2)
        return need

    for inst in ins:
        if inst.cls in ("label", "comment"):
            out.append(inst)
            continue
        if inst.cls == "nop":
            out.append(inst)
            slot += inst.tag + 1
            continue
        n = req(inst)
        while n > 0:
            k = min(n, 16)
            nop = Inst(f"s_nop {k - 1}", "nop")
            nop.tag = k - 1
            out.append(nop)
            slot += k
            n -= k
        out.append(inst)
        kind = inst.cls
        for r in inst.wr:
            lastw[r] = (slot, kind)
        if kind == "mfma":
            for r in inst.mf_c:
                lastc[r] = slot
        if kind == "vstore":
            for r in inst.rd:
                if isinstance(r, tuple) and r[0] in ("v", "a"):
                    laststore[r] = slot
        slot += 1
    return out


def finalize(ins):
    return insert_nops(insert_waits(ins))


def render(ins):
    lines = []
    for i in ins:
        if i.cls == "label":
            lines.append(i.text)
        else:
            lines.append("  " + i.text)
    return "\n".join(lines) + "\n"
```

```python
import sys, math
from asmfw import *

KNAME = "concat_heads__mha_block_cached__mha_block_cached__near_ridge_kernel"
K2NAME = "reduce_partials_kernel"


class Cfg:
    aux_w = ""
    aux_x = ""
    aux_kv = "nt"
    aux_p = ""
    stamps = False
    dump = None
    rot = True


sWG = s(2)
sPTR = 4
sX, sK, sV, sWQ, sWO, sP = s(32, 4), s(36, 4), s(40, 4), s(44, 4), s(48, 4), s(52, 4)
sWAVE, sJ, sG, sBR, sROT, sROT4 = s(56), s(57), s(58), s(59), s(60), s(61)
sRING = s(62)
sT0, sT1, sT2, sT3 = s(63), s(64), s(65), s(66)
sC = s(67)
sWOFF = s(68)
sXOFF = s(69)
sKOFF = s(70)
sREG = s(71)
sT4, sT5 = s(72), s(73)
sST = 76

vW = [v(192 + i) for i in range(4)]
vX = [v(196 + i) for i in range(3)]
vK = [v(199 + i) for i in range(3)]
vA = [v(202 + i) for i in range(4)]
vB = [v(206 + i) for i in range(4)]
vLANE, vT0, vT1, vT2, vT3 = v(210), v(211), v(220), v(221), v(222)
vV = v(212)
vVr = [v(213 + i) for i in range(4)]
vKr, vKx, vO = v(217), v(218), v(219)
vM, vMt, vL, vLt = v(223), v(224), v(225), v(226)
vA4 = [v(228 + i) for i in range(4)]
vW4 = [v(232 + i) for i in range(4)]
vB4 = v(236)
vPst = v(237)

R0 = 0
R1 = 98304


def acc(mt, nt):
    return v((nt * 4 + mt) * 16, 16)


def FA(buf, mt, base=0):
    return a(base + buf * 16 + mt * 4, 4)


def FB(buf, nt, base=32):
    return a(base + buf * 12 + nt * 4, 4)


def FBt(u, nt):
    return a(56 + (u * 3 + nt) * 4, 4)


def KF(kt, st):
    return a(104 + (kt * 8 + st) * 4, 4)


def VF(dt, ks):
    return a((dt * 6 + ks) * 4, 4)


P4A, P4B = 200, 232


def srd(p, dst, base_lo, base_hi, off, size):
    p.salu("s_add_u32", dst[0], base_lo, off)
    p.salu("s_addc_u32", dst[1], base_hi, 0)
    p.salu("s_mov_b32", dst[2], size)
    p.salu("s_mov_b32", dst[3], "0x00020000")


def stamp(p, cfg, n):
    if cfg.stamps:
        p.raw(f"s_memtime s[{sST + 2 * n}:{sST + 2 * n + 1}]", "other")
        p.waitcnt(lgkm=0)


def prologue(p, cfg):
    p.scmp("s_cmp_ge_u32", sWG, 256)
    p.branch("s_cbranch_scc1", "L_done")
    p.raw("s_load_dwordx16 s[4:19], s[0:1], 0", "smem")
    p.raw("s_load_dwordx8 s[20:27], s[0:1], 64", "smem")
    p.raw("s_load_dwordx2 s[28:29], s[0:1], 96", "smem")
    if cfg.stamps:
        p.raw(f"s_memrealtime s[{sST+20}:{sST+21}]", "other")
    stamp(p, cfg, 0)
    p.valu("v_lshrrev_b32", vT0, 6, v(0))
    p.valu("v_and_b32", vLANE, 63, v(0))
    p.valu("v_readfirstlane_b32", sWAVE, vT0)
    p.nop(3)
    p.salu("s_and_b32", sT0, sWG, 7)
    p.salu("s_lshr_b32", sT1, sWG, 3)
    p.salu("s_and_b32", sBR, sT0, 1)
    p.salu("s_lshr_b32", sT2, sT0, 1)
    p.salu("s_lshr_b32", sT3, sT1, 4)
    p.salu("s_and_b32", sJ, sT1, 15)
    p.salu("s_lshl_b32", sG, sT2, 1)
    p.salu("s_add_u32", sG, sG, sT3)
    if cfg.rot:
        p.salu("s_lshl_b32", sT3, sT3, 2)
        p.salu("s_add_u32", sROT, sJ, sT3)
        p.salu("s_and_b32", sROT, sROT, 7)
        p.salu("s_and_b32", sROT4, sJ, 7)
    else:
        p.salu("s_mov_b32", sROT, 0)
        p.salu("s_mov_b32", sROT4, 0)
    p.salu("s_mov_b32", sC, hex(f32bits(math.log2(math.e) / math.sqrt(128.0))))
    p.waitcnt(lgkm=0)
    p.scmp("s_cmp_eq_u32", sBR, 0)
    for i in range(5):
        p.salu("s_cselect_b64", s(4 + 2 * i, 2), s(4 + 2 * i, 2), s(14 + 2 * i, 2))
    p.salu("s_mul_i32", sT0, sJ, 98304)
    srd(p, sX, s(4), s(5), sT0, 98304)
    p.salu("s_lshl_b32", sT0, sJ, 5)
    p.salu("s_lshl_b32", sT1, sG, 2)
    p.salu("s_add_u32", sT0, sT0, sT1)
    p.salu("s_mul_i32", sT0, sT0, 24576)
    srd(p, sK, s(6), s(7), sT0, 98304)
    p.salu("s_mul_i32", sREG, sWAVE, 24576)
    p.salu("s_add_u32", sT0, sT0, sREG)
    srd(p, sV, s(8), s(9), sT0, 24576)
    p.salu("s_add_u32", sT1, sT1, sWAVE)
    p.salu("s_lshl_b32", sT1, sT1, 8)
    p.salu("s_sub_u32", sT2, 512 * 8192, sT1)
    srd(p, sWQ, s(10), s(11), sT1, sT2)
    p.salu("s_lshl_b32", sT0, sG, 19)
    p.salu("s_lshl_b32", sT1, sWAVE, 8)
    p.salu("s_add_u32", sT0, sT0, sT1)
    p.salu("s_sub_u32", sT2, 512 * 1024, sT1)
    srd(p, sWO, s(12), s(13), sT0, sT2)
    p.salu("s_lshl_b32", sT0, sBR, 4)
    p.salu("s_add_u32", sT0, sT0, sJ)
    p.salu("s_lshl_b32", sT0, sT0, 3)
    p.salu("s_add_u32", sT0, sT0, sG)
    p.salu("s_mul_i32", sT0, sT0, 98304)
    p.salu("s_add_u32", sT0, sT0, sREG)
    srd(p, sP, s(28), s(29), sT0, 24576)
    p.salu("s_lshl_b32", sRING, sWAVE, 14)
    p.salu("s_add_u32", sRING, sRING, R1)

    L = vLANE
    p.valu("v_lshrrev_b32", vT0, 4, L)
    p.valu("v_bfe_u32", vT1, L, 2, 2)
    p.valu("v_xor_b32", vT1, vT1, vT0)
    p.valu("v_lshlrev_b32", vT1, 6, vT1)
    p.valu("v_and_b32", vT2, 3, L)
    p.valu("v_lshlrev_b32", vT2, 4, vT2)
    p.valu("v_add_u32", vT1, vT1, vT2)
    p.valu("v_lshlrev_b32", vT2, 13, vT0)
    p.valu("v_add_u32", vW[0], vT1, vT2)
    for b in range(1, 4):
        p.valu("v_add_u32", vW[b], b * (32768 - 1024), vW[0])
    p.valu("v_lshlrev_b32", vT2, 10, vT0)
    p.valu("v_add_u32", vW4[0], vT1, vT2)
    for b in range(1, 4):
        p.valu("v_add_u32", vW4[b], b * (4096 - 1024), vW4[0])
    p.valu("v_lshlrev_b32", vT2, 8, vT0)
    p.valu("v_add_u32", vV, vT1, vT2)
    p.valu("v_lshrrev_b32", vT0, 3, L)
    p.valu("v_and_b32", vT1, 7, L)
    for u in range(3):
        p.salu("s_add_u32", sT0, sWAVE, u)
        p.salu("s_and_b32", sT0, sT0, 1)
        p.salu("s_lshl_b32", sT0, sT0, 2)
        p.valu("v_lshrrev_b32", vT2, 1, vT0)
        p.valu("v_add_u32", vT2, sT0, vT2)
        p.valu("v_xor_b32", vT2, vT2, vT1)
        p.valu("v_lshlrev_b32", vT2, 4, vT2)
        p.salu("s_mul_i32", sT1, sWAVE, 24 * 1024)
        p.salu("s_add_u32", sT1, sT1, u * (8 * 1024 - 1024))
        p.valu("v_lshlrev_b32", vT3, 10, vT0)
        p.valu("v_add3_u32", vX[u], vT2, vT3, sT1)
    p.valu("v_lshrrev_b32", vT0, 4, L)
    p.valu("v_and_b32", vT1, 15, L)
    p.valu("v_xor_b32", vT1, vT1, vT0)
    for u in range(3):
        p.salu("s_mul_i32", sT0, sWAVE, 3)
        p.salu("s_add_u32", sT0, sT0, u)
        p.salu("s_and_b32", sT1, sT0, 3)
        p.salu("s_lshl_b32", sT1, sT1, 2)
        p.valu("v_xor_b32", vT2, sT1, vT1)
        p.valu("v_lshlrev_b32", vT2, 4, vT2)
        p.valu("v_lshlrev_b32", vT3, 8, vT0)
        p.salu("s_lshl_b32", sT0, sT0, 10)
        p.salu("s_sub_u32", sT0, sT0, u * 1024)
        p.valu("v_add3_u32", vK[u], vT2, vT3, sT0)
    p.valu("v_bfe_u32", vT0, L, 2, 2)
    p.valu("v_and_b32", vT1, 3, L)
    p.valu("v_bfe_u32", vT2, L, 4, 1)
    p.valu("v_lshlrev_b32", vT2, 5, vT2)
    p.valu("v_lshlrev_b32", vT3, 8, vT0)
    p.valu("v_add_u32", vT2, vT2, vT3)
    p.valu("v_lshlrev_b32", vT3, 3, vT1)
    p.valu("v_add_u32", vMt, vT2, vT3)
    p.valu("v_and_b32", vT3, 1, vT1)
    p.valu("v_lshlrev_b32", vT3, 4, vT3)
    p.valu("v_lshrrev_b32", vT1, 1, vT1)
    p.valu("v_lshlrev_b32", vT1, 3, vT1)
    p.valu("v_add3_u32", vM, vT2, vT3, vT1)
    p.valu("v_lshrrev_b32", vT1, 5, L)
    p.valu("v_lshlrev_b32", vT2, 11, vT1)
    p.valu("v_add3_u32", vM, vM, vT2, sRING)
    p.valu("v_lshlrev_b32", vT2, 10, vT1)
    p.valu("v_add_u32", vMt, vMt, vT2)
    for c in range(4):
        p.valu("v_xor_b32", vT2, c, vT0)
        p.valu("v_lshlrev_b32", vT2, 6, vT2)
        p.valu("v_add_u32", vA[c], vM, vT2)
        p.valu("v_add3_u32", vA4[c], vMt, vT2, sRING)
        p.valu("v_add3_u32", vVr[c], vMt, vT2, sREG)
    p.valu("v_and_b32", vT0, 31, L)
    p.valu("v_bfe_u32", vT2, L, 1, 3)
    p.valu("v_xor_b32", vT2, vT2, vT1)
    p.valu("v_lshlrev_b32", vT2, 4, vT2)
    p.valu("v_lshlrev_b32", vT3, 7, vT0)
    p.valu("v_add_u32", vB[0], vT2, vT3)
    for u in range(1, 4):
        p.valu("v_xor_b32", vB[u], u << 5, vB[0])
    p.valu("v_and_b32", vT2, 15, L)
    p.valu("v_xor_b32", vT2, vT2, vT1)
    p.valu("v_lshlrev_b32", vT2, 4, vT2)
    p.valu("v_lshlrev_b32", vT3, 8, vT0)
    p.valu("v_add3_u32", vKr, vT2, vT3, sREG)
    p.valu("v_lshlrev_b32", vPst, 4, L)
    p.valu("v_add_u32", vO, sREG, vPst)


def f32bits(x):
    import struct
    return struct.unpack("<I", struct.pack("<f", x))[0]


def chunk_of(p, dst, rot, i):
    p.salu("s_add_u32", dst, rot, i)
    p.salu("s_and_b32", dst, dst, 7)


def issue_x(p, cfg, i):
    chunk_of(p, sT0, sROT, i)
    p.salu("s_lshl_b32", sXOFF, sT0, 7)
    p.salu("s_mul_i32", sT1, sWAVE, 3072)
    p.salu("s_add_u32", M0, sT1, R0 + i * 12288)
    for u in range(3):
        p.dma(vX[u], sX, sXOFF, offset=u * 1024, lds=[f"x{i}"], aux=cfg.aux_x)


def issue_k(p, cfg, i):
    p.salu("s_mov_b32", sKOFF, i * 12288)
    p.salu("s_mul_i32", sT1, sWAVE, 3072)
    p.salu("s_add_u32", M0, sT1, R0 + i * 12288)
    for u in range(3):
        p.dma(vK[u], sK, sKOFF, offset=u * 1024, lds=[f"x{i}", f"k{i}"], aux=cfg.aux_kv)


def issue_w(p, cfg, st, vw, srd_, rot, chunk_shift, step_shift, tokp):
    i, u = st >> 2, st & 3
    if u == 0:
        chunk_of(p, sT0, rot, i)
        p.salu("s_lshl_b32", sWOFF, sT0, chunk_shift)
    else:
        p.salu("s_add_u32", sWOFF, sWOFF, 1 << step_shift)
    p.salu("s_add_u32", M0, sRING, u * 4096)
    for b in range(4):
        p.dma(vw[b], srd_, sWOFF, offset=b * 1024, lds=[f"{tokp}{u}"], aux=cfg.aux_w)


def read_A(p, st, buf, va, second, base, tokp):
    u = st & 3
    for mt in range(4):
        f = FA(buf, mt, base)
        p.ds_read("ds_read_b64_tr_b16", f.sub(0, 2), va[mt], u * 4096, lds=[f"{tokp}{u}"])
        p.ds_read("ds_read_b64_tr_b16", f.sub(2, 2), va[mt], u * 4096 + second, lds=[f"{tokp}{u}"])


def phase1(p, cfg):
    p.comment("---- phase 1: Q^T = wq^T x^T")
    issue_x(p, cfg, 0)
    issue_w(p, cfg, 0, vW, sWQ, sROT, 19, 17, "r")
    issue_w(p, cfg, 1, vW, sWQ, sROT, 19, 17, "r")
    issue_x(p, cfg, 1)
    issue_w(p, cfg, 2, vW, sWQ, sROT, 19, 17, "r")
    issue_w(p, cfg, 3, vW, sWQ, sROT, 19, 17, "r")
    p.barrier(lds_ready=["x0"])
    stamp(p, cfg, 1)

    def read_B2(st):
        i, u = st >> 2, st & 3
        for nt in range(3):
            dst = FB(st & 1, nt) if st < 28 else FBt(st - 28, nt)
            p.ds_read("ds_read_b128", dst, vB[u], nt * 4096, lds=[f"x{i}"])

    def bump_B():
        for u in range(4):
            p.valu("v_add_u32", vB[u], 12288, vB[u])

    read_B2(0)
    read_A(p, 0, 0, vA, 1024, 0, "r")
    for st in range(32):
        i, u = st >> 2, st & 3
        buf = st & 1
        fill = Prog()
        q = fill
        nxt = st + 1
        if u == 3 and i < 7:
            q.barrier(lds_ready=[f"x{i+1}"], lds_free=[f"x{i}"])
        if st == 28:
            q.barrier(lds_free=["x7"])
        saved = p.ins
        p.ins = fill.ins
        if nxt < 32:
            if u == 3:
                bump_B()
            if nxt < 28:
                read_B2(nxt)
            elif nxt == 28:
                for z in range(28, 32):
                    read_B2(z)
            read_A(p, nxt, nxt & 1, vA, 1024, 0, "r")
        if st + 4 < 32:
            issue_w(p, cfg, st + 4, vW, sWQ, sROT, 19, 17, "r")
        if u == 0 and i + 2 <= 7:
            issue_x(p, cfg, i + 2)
        if u == 3 and i < 7:
            issue_k(p, cfg, i)
        if st == 28:
            issue_k(p, cfg, 7)
        p.ins = saved
        mf = Prog()
        for nt in range(3):
            for mt in range(4):
                B = FB(buf, nt) if st < 28 else FBt(st - 28, nt)
                mf.mfma(acc(mt, nt), FA(buf, mt), B, 0 if st == 0 else None)
        interleave(p, mf.ins, fill.ins)


def interleave(p, mfmas, fill, first_gap=0):
    n = len(mfmas)
    per = [[] for _ in range(n)]
    tot = len(fill)
    for k, ins in enumerate(fill):
        g = first_gap + (k * (n - first_gap)) // max(tot, 1)
        per[min(g, n - 1)].append(ins)
    for m, f in zip(mfmas, per):
        p.add(m)
        for x in f:
            p.add(x)


def cvt_tile(p, dst, src):
    for r in range(8):
        p.valu("v_cvt_pk_bf16_f32", dst[r], src[2 * r], src[2 * r + 1])


def SB(b):
    return v(96 + 48 * b, 48)


def s_mfma(p, j, sb):
    for st in range(8):
        for kt in range(3):
            p.mfma(sb.sub(16 * kt, 16), KF(kt, st), v(32 * j + 4 * st, 4), 0 if st == 0 else None)


def softmax(p, j, sb):
    x = [sb[r] for r in range(48)]
    p.valu("v_max3_f32", vM, x[0], x[1], x[2])
    for r in range(3, 47, 2):
        p.valu("v_max3_f32", vM, vM, x[r], x[r + 1])
    p.valu("v_max_f32", vM, vM, x[47])
    p.valu("v_mov_b32", vMt, vM)
    p.valu("v_permlane32_swap_b32", vM, vMt)
    p.valu("v_max_f32", vM, vM, vMt)
    p.valu("v_mul_f32", vM, sC, vM)
    for r in range(48):
        p.valu("v_fma_f32", x[r], x[r], sC, Neg(vM))
        p.valu("v_exp_f32", x[r], x[r])
    p.valu("v_add_f32", vL, x[0], x[1])
    for r in range(2, 48):
        p.valu("v_add_f32", vL, vL, x[r])
    p.valu("v_mov_b32", vLt, vL)
    p.valu("v_permlane32_swap_b32", vL, vLt)
    p.valu("v_add_f32", vL, vL, vLt)
    p.valu("v_rcp_f32", vL, vL)
    for r in range(48):
        p.valu("v_mul_f32", x[r], vL, x[r])
    for r in range(24):
        p.valu("v_cvt_pk_bf16_f32", v(32 * j + r), x[2 * r], x[2 * r + 1])


def phase23(p, cfg):
    p.comment("---- phase 2/3: attention")
    stamp(p, cfg, 2)
    p.barrier(lds_ready=[f"k{i}" for i in range(8)])
    for st in range(8):
        if st == 0:
            ad = vKr
        else:
            p.valu("v_xor_b32", vKx, st << 5, vKr)
            ad = vKx
        for kt in range(3):
            p.ds_read("ds_read_b128", KF(kt, st), ad, kt * 8192, lds=["kreg"])
    for t in range(12):
        cvt_tile(p, v(8 * t, 8), v(16 * t, 16))
    p.salu("s_mov_b32", M0, sREG)
    for blk in range(24):
        if blk % 4 == 0:
            p.salu("s_mov_b32", sKOFF, blk * 1024)
            p.salu("s_add_u32", M0, sREG, blk * 1024)
        p.dma(vV, sV, sKOFF, offset=(blk % 4) * 1024, lds=["kreg", "vreg"], aux=cfg.aux_kv)
    for st in range(4):
        issue_w(p, cfg, st, vW4, sWO, sROT4, 16, 14, "r")
    stamp(p, cfg, 3)
    s_mfma(p, 0, SB(0))
    s_mfma(p, 1, SB(1))
    softmax(p, 0, SB(0))
    s_mfma(p, 2, SB(0))
    softmax(p, 1, SB(1))
    softmax(p, 2, SB(0))
    stamp(p, cfg, 4)
    for ks in range(6):
        for dt in range(4):
            f = VF(dt, ks)
            p.ds_read("ds_read_b64_tr_b16", f.sub(0, 2), vVr[dt], ks * 4096, lds=["vreg"])
            p.ds_read("ds_read_b64_tr_b16", f.sub(2, 2), vVr[dt], ks * 4096 + 2048, lds=["vreg"])
    Oacc = v(96, 64)
    Ob = v(160, 32)
    for j in range(3):
        for ks in range(6):
            for dt in range(4):
                p.mfma(Oacc.sub(16 * dt, 16), VF(dt, ks), v(32 * j + 4 * ks, 4), 0 if ks == 0 else None)
        for dt in range(4):
            cvt_tile(p, Ob.sub(8 * dt, 8), Oacc.sub(16 * dt, 16))
        for st in range(8):
            p.ds_write("ds_write_b128", vO, Ob.sub(4 * st, 4), st * 3072 + j * 1024, lds=["vreg", "oreg"])
    p.barrier(lds_ready=["oreg"])
    stamp(p, cfg, 5)


def phase4(p, cfg):
    p.comment("---- phase 4: out^T partial = wo^T O^T")

    def setB(i):
        chunk_of(p, sT0, sROT4, i)
        p.salu("s_mul_i32", sT0, sT0, 12288)
        p.valu("v_add_u32", vB4, sT0, vPst)

    def read_B(st):
        u = st & 3
        for nt in range(3):
            p.ds_read("ds_read_b128", FB(st & 1, nt, P4B), vB4, u * 3072 + nt * 1024, lds=["oall"])

    setB(0)
    read_B(0)
    read_A(p, 0, 0, vA4, 2048, P4A, "r")
    for st in range(32):
        i, u = st >> 2, st & 3
        buf = st & 1
        fill = Prog()
        saved = p.ins
        p.ins = fill.ins
        nxt = st + 1
        if nxt < 32:
            if u == 3:
                setB(i + 1)
            read_B(nxt)
            read_A(p, nxt, nxt & 1, vA4, 2048, P4A, "r")
        if st + 4 < 32:
            issue_w(p, cfg, st + 4, vW4, sWO, sROT4, 16, 14, "r")
        p.ins = saved
        mf = Prog()
        for nt in range(3):
            for mt in range(4):
                mf.mfma(acc(mt, nt), FA(buf, mt, P4A), FB(buf, nt, P4B), 0 if st == 0 else None)
        interleave(p, mf.ins, fill.ins)
    stamp(p, cfg, 6)


def epilogue(p, cfg):
    p.comment("---- epilogue: bf16 partials")
    for t in range(12):
        cvt_tile(p, v(16 * t, 8), v(16 * t, 16))
        if t % 2 == 0:
            p.salu("s_mov_b32", sT0, t * 2048)
        for h in range(2):
            p.bstore("buffer_store_dwordx4", v(16 * t + 4 * h, 4), vPst, sP, sT0, offset=(t % 2) * 2048 + h * 1024, aux=cfg.aux_p)
    stamp(p, cfg, 7)
    if cfg.stamps:
        p.waitcnt(vm=0)
        p.raw(f"s_memtime s[{sST+16}:{sST+17}]", "other")
        p.raw(f"s_memrealtime s[{sST+22}:{sST+23}]", "other")
        p.waitcnt(lgkm=0)
        p.salu("s_lshl_b32", sT0, sWG, 10)
        p.salu("s_lshl_b32", sT1, sWAVE, 8)
        p.salu("s_add_u32", sT0, sT0, sT1)
        p.salu("s_add_u32", sT0, sT0, 64 << 20)
        srd(p, sP, s(28), s(29), sT0, 256)
        for n in range(24):
            p.valu("v_mov_b32", v(n), s(sST + n))
        p.valu("v_mov_b32", vT0, 0)
        p.raw("s_mov_b64 exec, 1", "salu")
        for n in range(6):
            p.bstore("buffer_store_dwordx4", v(4 * n, 4), vT0, sP, 0, offset=16 * n)


def kernel_desc(name, vgpr, acc_off):
    return f""".section .rodata,"a"
.p2align 6
.amdhsa_kernel {name}
  .amdhsa_next_free_vgpr {vgpr}
  .amdhsa_next_free_sgpr 102
  .amdhsa_accum_offset {acc_off}
  .amdhsa_group_segment_fixed_size 0
  .amdhsa_kernarg_size 104
  .amdhsa_user_sgpr_count 2
  .amdhsa_user_sgpr_kernarg_segment_ptr 1
  .amdhsa_system_sgpr_workgroup_id_x 1
.end_amdhsa_kernel
.text
"""


def gen_main(cfg):
    p = Prog()
    prologue(p, cfg)
    phase1(p, cfg)
    phase23(p, cfg)
    phase4(p, cfg)
    epilogue(p, cfg)
    ins = finalize(p.ins)
    txt = f".globl {KNAME}\n.p2align 8\n.type {KNAME},@function\n{KNAME}:\n"
    txt += render(ins)
    txt += "L_done:\n  s_endpgm\n"
    return txt, ins


def gen_reduce(cfg):
    p = Prog()
    p.scmp("s_cmp_ge_u32", sWG, 256)
    p.branch("s_cbranch_scc1", "L_done2")
    p.raw("s_load_dwordx2 s[4:5], s[0:1], 80", "smem")
    p.raw("s_load_dwordx2 s[6:7], s[0:1], 96", "smem")
    p.valu("v_lshrrev_b32", v(1), 6, v(0))
    p.valu("v_and_b32", v(2), 63, v(0))
    p.valu("v_readfirstlane_b32", s(16), v(1))
    p.nop(3)
    p.salu("s_lshr_b32", s(17), sWG, 3)
    p.salu("s_and_b32", s(18), sWG, 7)
    p.waitcnt(lgkm=0)
    p.salu("s_mul_i32", s(19), s(17), 8 * 98304)
    srd(p, s(8, 4), s(6), s(7), s(19), 8 * 98304)
    p.salu("s_mov_b32", s(12), s(4))
    p.salu("s_mov_b32", s(13), s(5))
    p.salu("s_mov_b32", s(14), 16 * 96 * 1024 * 2)
    p.salu("s_mov_b32", s(15), "0x00020000")
    p.valu("v_lshlrev_b32", v(3), 4, v(2))
    p.salu("s_mul_i32", s(20), s(18), 12)
    p.salu("s_mul_i32", s(21), s(16), 3)
    p.salu("s_add_u32", s(20), s(20), s(21))
    for u in range(3):
        p.salu("s_add_u32", s(22), s(20), u)
        p.salu("s_lshl_b32", s(22), s(22), 10)
        for g in range(8):
            p.salu("s_add_u32", s(23), s(22), g * 98304)
            p.bload("buffer_load_dwordx4", v(16 + (u * 8 + g) * 4, 4), v(3), s(8, 4), s(23), aux=cfg.aux_p)
    p.valu("v_and_b32", v(4), 31, v(2))
    p.valu("v_lshlrev_b32", v(4), 11, v(4))
    p.valu("v_lshrrev_b32", v(5), 5, v(2))
    p.valu("v_lshlrev_b32", v(5), 4, v(5))
    p.valu("v_add_u32", v(4), v(4), v(5))
    p.salu("s_and_b32", s(24), s(17), 15)
    p.salu("s_lshr_b32", s(25), s(17), 4)
    p.salu("s_mul_i32", s(24), s(24), 96 * 2048)
    p.salu("s_lshl_b32", s(25), s(25), 10)
    p.salu("s_add_u32", s(24), s(24), s(25))
    p.salu("s_lshr_b32", s(25), s(18), 1)
    p.salu("s_lshl_b32", s(25), s(25), 8)
    p.salu("s_add_u32", s(24), s(24), s(25))
    for u in range(3):
        p.salu("s_and_b32", s(26), s(18), 1)
        p.salu("s_mul_i32", s(26), s(26), 12)
        p.salu("s_add_u32", s(26), s(26), s(21))
        p.salu("s_add_u32", s(26), s(26), u)
        p.salu("s_and_b32", s(27), s(26), 1)
        p.salu("s_lshl_b32", s(27), s(27), 5)
        p.salu("s_lshr_b32", s(26), s(26), 1)
        p.salu("s_and_b32", s(28), s(26), 3)
        p.salu("s_lshl_b32", s(28), s(28), 6)
        p.salu("s_add_u32", s(27), s(27), s(28))
        p.salu("s_lshr_b32", s(26), s(26), 2)
        p.salu("s_lshl_b32", s(26), s(26), 16)
        p.salu("s_add_u32", s(27), s(27), s(26))
        p.salu("s_add_u32", s(27), s(27), s(24))
        A = [v(120 + k) for k in range(8)]
        for g in range(8):
            src = v(16 + (u * 8 + g) * 4, 4)
            for k in range(4):
                if g == 0:
                    p.valu("v_lshlrev_b32", A[2 * k], 16, src[k])
                    p.valu("v_and_b32", A[2 * k + 1], "0xffff0000", src[k])
                else:
                    p.valu("v_lshlrev_b32", v(130), 16, src[k])
                    p.valu("v_and_b32", v(131), "0xffff0000", src[k])
                    p.valu("v_add_f32", A[2 * k], A[2 * k], v(130))
                    p.valu("v_add_f32", A[2 * k + 1], A[2 * k + 1], v(131))
        D = v(132 + 4 * u, 4)
        for k in range(4):
            p.valu("v_cvt_pk_bf16_f32", D[k], A[2 * k], A[2 * k + 1])
        p.valu("v_permlane32_swap_b32", D[0], D[2])
        p.valu("v_permlane32_swap_b32", D[1], D[3])
        p.bstore("buffer_store_dwordx4", D, v(4), s(12, 4), s(27))
    ins = finalize(p.ins)
    txt = f".globl {K2NAME}\n.p2align 8\n.type {K2NAME},@function\n{K2NAME}:\n"
    txt += render(ins)
    txt += "L_done2:\n  s_endpgm\n"
    return txt


HEADER = """; fused Q-projection + attention + output projection for both branches (generated by my own script)
; @launch kernel=%s grid=(256,1,1) block=(256,1,1) lds=163840
; @launch kernel=%s grid=(256,1,1) block=(256,1,1) lds=0
.amdgcn_target "amdgcn-amd-amdhsa--gfx950"
.text
""" % (KNAME, K2NAME)


def build(cfg):
    main, ins = gen_main(cfg)
    txt = HEADER + main + gen_reduce(cfg)
    txt += kernel_desc(KNAME, 512, 256)
    txt += kernel_desc(K2NAME, 160, 160)
    return txt


if __name__ == "__main__":
    cfg = Cfg()
    out = sys.argv[1] if len(sys.argv) > 1 else "k1.s"
    for kv in sys.argv[2:]:
        k, val = kv.split("=")
        cur = getattr(cfg, k)
        setattr(cfg, k, (val == "1") if isinstance(cur, bool) else val)
    open(out, "w").write(build(cfg))
    print("wrote", out)
```
